```python
import torch

def _softmax(x, axis=-1):
    return torch.softmax(x, dim=axis)
def _gelu(x):
    return torch.nn.functional.gelu(x, approximate="tanh")
def _silu(x):
    return torch.nn.functional.silu(x)
def _sigmoid(x):
    return torch.sigmoid(x)
def _layernorm(x, axis=-1, eps=1e-5):
    m = x.mean(dim=axis, keepdim=True)
    v = x.var(dim=axis, keepdim=True, unbiased=False)
    return (x - m) / torch.sqrt(v + eps)
def _scatter_add(tgt, idx, src, axis=0):
    return tgt.clone().index_add_(axis, idx, src)
def _segment_sum(src, seg, n):
    out = torch.zeros((n,) + src.shape[1:], dtype=src.dtype)
    return out.index_add_(0, seg, src)
def _pad(x, pw):
    flat = tuple(v for pair in reversed(pw) for v in pair)
    return torch.nn.functional.pad(x, flat)

kernel_name = 'recurrent_scan__mha_block_cached__glu_gated_bilinear__decode'

def setup_inputs():

    _w = (lambda a: (lambda t: t.to(torch.bfloat16) if t.is_floating_point() else t)(torch.as_tensor(a)))
    def _A_setup():
        B, Sq, D = 4, 1, 448
        H, Sk, Dh = 16, 4096, 256
        return {
            "x": _w((lambda *s: torch.randn(*s, dtype=torch.bfloat16) * 0.2)(B, Sq, D)),
            "k_cache": _w((lambda *s: torch.randn(*s, dtype=torch.bfloat16) * 1.6)(B, H, Sk, Dh)),
            "v_cache": _w((lambda *s: torch.randn(*s, dtype=torch.bfloat16) * 1.6)(B, H, Sk, Dh)),
            "wq": _w((lambda *s: torch.randn(*s, dtype=torch.bfloat16) * 1.6)(D, H * Dh) * (D ** -0.5)),
            "wo": _w((lambda *s: torch.randn(*s, dtype=torch.bfloat16) * 1.6)(H * Dh, D) * ((H * Dh) ** -0.5)),
        }
    _A_in = _A_setup()

    def _B_setup():
        B, S, D, F = 4, 1, 448, 1792
        return {
            "x": _w((lambda *s: torch.randn(*s, dtype=torch.bfloat16) * 0.2)(B, S, D)),
            "w_gate": _w((lambda *s: torch.randn(*s, dtype=torch.bfloat16) * 0.8)(D, F) * (D ** -0.5)),
            "w_up": _w((lambda *s: torch.randn(*s, dtype=torch.bfloat16) * 0.8)(D, F) * (D ** -0.5)),
            "w_down": _w((lambda *s: torch.randn(*s, dtype=torch.bfloat16) * 0.8)(F, D) * (F ** -0.5)),
        }
    _B_in = _B_setup()

    return {
        "A_x": _A_in["x"],
        "A_k_cache": _A_in["k_cache"],
        "A_v_cache": _A_in["v_cache"],
        "A_wq": _A_in["wq"],
        "A_wo": _A_in["wo"],
        "B_x": _B_in["x"],
        "B_w_gate": _B_in["w_gate"],
        "B_w_up": _B_in["w_up"],
        "B_w_down": _B_in["w_down"],
    }

def reference(A_x, A_k_cache, A_v_cache, A_wq, A_wo, B_x, B_w_gate, B_w_up, B_w_down):
    def _A_ref(x, k_cache, v_cache, wq, wo):
        B, Sq, D = x.shape
        H, Dh = 16, 256
        q = (lambda x, *d: x.permute(*d))((x @ wq).reshape(B, Sq, H, Dh), 0, 2, 1, 3)
        scores = torch.einsum("bhqd,bhkd->bhqk", q, k_cache) * (Dh ** -0.5)
        p = _softmax(scores, axis=-1)
        o = torch.einsum("bhqk,bhkd->bhqd", p, v_cache)
        return (lambda x, *d: x.permute(*d))(o, 0, 2, 1, 3).reshape(B, Sq, H * Dh) @ wo

    def _B_ref(x, w_gate, w_up, w_down):
        g = torch.einsum("bsd,df->bsf", x, w_gate)
        u = torch.einsum("bsd,df->bsf", x, w_up)
        h = g * u
        return torch.einsum("bsf,fd->bsd", h, w_down)

    x = A_x
    xn = _layernorm(x, axis=-1)
    s = _A_ref(xn, A_k_cache, A_v_cache, A_wq, A_wo)
    g = _silu(_B_ref(xn, B_w_gate, B_w_up, B_w_down))
    return x + s * g
```

```python
import sys
KN = "recurrent_scan__mha_block_cached__glu_gated_bilinear__decode_kernel"
HDR = open("recurrent_scan__mha_block_cached__glu_gated_bilinear__decode.s.ref").read().split("; Override launch")[0]

LOG2E = 1.4426950408889634
import struct
def f2u(x): return struct.unpack("<I", struct.pack("<f", x))[0]

class G:
    def __init__(s): s.L = []
    def __call__(s, t): s.L.append("    " + t)
    def lab(s, t): s.L.append(t + ":")
    def c(s, t): s.L.append("    ; " + t)
    def nop(s, n):
        while n > 0:
            k = min(n, 16); s(f"s_nop {k-1}"); n -= k

DPP_ALL = "row_mask:0xf bank_mask:0xf"

L_QP   = 0
L_F1   = 16384
L_F2   = 24576
L_YP   = 53248
L_QBF  = 81920
L_OP   = 82432
L_ML   = 86528
L_CNT  = 86592
L_TOT  = 86656

WS_F = 256 * 2048
WS_STAMP = 1 << 20

def row_reduce(g, op, v, tmp=None):
    for r in (8, 4, 2, 1):
        g.nop(2)
        g(f"{op}_dpp v{v}, v{v}, v{v} row_ror:{r} {DPP_ALL}")

def wave_reduce(g, op, v, s0):
    row_reduce(g, op, v)
    g.nop(1)
    for i in range(4):
        g(f"v_readlane_b32 s{s0+i}, v{v}, {16*i}")
    g.nop(2)
    g(f"v_mov_b32 v{v}, s{s0}")
    for i in range(1, 4):
        g(f"{op} v{v}, s{s0+i}, v{v}")

def bf16r(g, v, src=None):
    src = v if src is None else src
    g(f"v_cvt_pk_bf16_f32 v{v}, v{src}, v{src}")
    g(f"v_and_b32 v{v}, 0xffff0000, v{v}")

def gen(path, wgmap="lin", stamps=False, round_scores=True, kvflag="nt", wflag=""):
    g = G()
    def stamp(idx):
        if stamps:
            g(f"s_memrealtime s[{64+2*idx}:{65+2*idx}]")
    g.L.append(HDR.rstrip("\n"))
    g.L.append(f"; @launch kernel={KN} grid=(256,1,1) block=(768,1,1) lds={L_TOT}")
    g.L.append("; @launch kernel=final_kernel grid=(28,1,1) block=(256,1,1) lds=4096")
    g.L.append('.amdgcn_target "amdgcn-amd-amdhsa--gfx950"')
    g.L.append(".text"); g.L.append(f".globl {KN}"); g.L.append(".p2align 8"); g.L.append(f".type {KN},@function")
    g.lab(KN)
    g("s_cmp_ge_u32 s2, 256"); g("s_cbranch_scc1 L_end")
    stamp(0)
    g("s_load_dwordx8 s[4:11], s[0:1], 0")
    g("s_load_dwordx2 s[12:13], s[0:1], 32")
    g("s_load_dwordx4 s[16:19], s[0:1], 48")
    g("s_load_dwordx2 s[20:21], s[0:1], 64")
    g("s_load_dwordx2 s[22:23], s[0:1], 88")
    g("v_lshrrev_b32 v1, 6, v0")
    g("v_and_b32 v2, 15, v0")
    g("v_readfirstlane_b32 s27, v1")
    g("v_bfe_u32 v3, v0, 4, 2")
    if wgmap == "lin":
        g("s_and_b32 s26, s2, 3"); g("s_bfe_u32 s25, s2, 0x40002"); g("s_lshr_b32 s24, s2, 6")
    elif wgmap == "head":
        g("s_and_b32 s25, s2, 7"); g("s_lshl_b32 s25, s25, 1"); g("s_bfe_u32 s3, s2, 0x10003"); g("s_or_b32 s25, s25, s3")
        g("s_bfe_u32 s26, s2, 0x20004"); g("s_lshr_b32 s24, s2, 6")
    elif wgmap == "pair":
        g("s_bfe_u32 s25, s2, 0x20001"); g("s_lshl_b32 s25, s25, 2"); g("s_bfe_u32 s3, s2, 0x20004"); g("s_or_b32 s25, s25, s3")
        g("s_and_b32 s26, s2, 1"); g("s_bfe_u32 s3, s2, 0x10003"); g("s_lshl_b32 s3, s3, 1"); g("s_or_b32 s26, s26, s3")
        g("s_lshr_b32 s24, s2, 6")
    g("s_and_b32 s28, s2, 63")
    g("s_lshl_b32 s29, s24, 4"); g("s_add_u32 s29, s29, s25"); g("s_lshl_b32 s29, s29, 2"); g("s_add_u32 s29, s29, s26")
    g("v_and_b32 v8, 1, v2"); g("v_lshlrev_b32 v8, 4, v8"); g("v_mov_b32 v9, 0xffff"); g("v_lshlrev_b32 v8, v8, v9")
    g("v_bfe_u32 v9, v2, 1, 2")
    for j in range(4):
        g(f"v_cmp_eq_u32 vcc, {j}, v9"); g.nop(2); g(f"v_cndmask_b32 v{4+j}, 0, v8, vcc")
    g("s_mov_b32 s35, 0x20000"); g("s_mov_b32 s39, 0x20000"); g("s_mov_b32 s43, 0x20000"); g("s_mov_b32 s47, 0x20000")
    g("s_cmp_lt_u32 s27, 8"); g("s_cbranch_scc1 L_helper")

    RING = 40
    Q = 8
    PT = 16
    SC = 32
    VOFF = 36
    g.c("streamer")
    g("s_sub_u32 s30, s27, 8")
    g("s_lshl_b32 s3, s30, 11")
    g(f"v_lshlrev_b32 v{VOFF}, 9, v3"); g("v_lshlrev_b32 v1, 4, v2"); g(f"v_add3_u32 v{VOFF}, v{VOFF}, v1, s3")
    for t in range(16): g(f"s_mov_b32 s{48+t}, {t*8192}")
    g("s_lshl_b32 s3, s29, 19")
    g("s_waitcnt lgkmcnt(0)")
    g("s_add_u32 s32, s6, s3"); g("s_addc_u32 s33, s7, 0"); g("s_mov_b32 s34, 131072")
    g("s_add_u32 s14, s8, s3"); g("s_addc_u32 s15, s9, 0")
    def ld(t, half):
        s = RING + (2 * t + half) * 4
        off = " offset:256" if half else ""
        g(f"buffer_load_dwordx4 v[{s}:{s+3}], v{VOFF}, s[32:35], s{48+t} offen{off} {kvflag}")
    for t in range(16):
        ld(t, 0); ld(t, 1)
    g("s_add_u32 s32, s32, 131072"); g("s_addc_u32 s33, s33, 0")
    stamp(1)
    g("s_barrier")
    g("s_barrier")
    g(f"v_add_u32 v1, {L_QBF}, v1")
    g(f"ds_read_b128 v[{Q}:{Q+3}], v1"); g(f"ds_read_b128 v[{Q+4}:{Q+7}], v1 offset:256")
    g("s_mov_b32 s40, 0xcccccccc"); g("s_mov_b32 s41, 0xcccccccc")
    g("s_mov_b32 s44, 0xaaaaaaaa"); g("s_mov_b32 s45, 0xaaaaaaaa")
    g("s_mov_b32 s31, 0")
    g("s_waitcnt lgkmcnt(0)")
    stamp(2)
    g.lab("L_kloop")
    for t in range(16):
        g("s_waitcnt vmcnt(30)")
        s = RING + 2 * t * 4
        for i in range(8):
            c = "0" if i == 0 else f"v{PT+t}"
            g(f"v_dot2_f32_bf16 v{PT+t}, v{s+i}, v{Q+i}, {c}")
        ld(t, 0); ld(t, 1)
    g("s_add_u32 s32, s32, 131072"); g("s_addc_u32 s33, s33, 0")
    g("s_cmp_eq_u32 s31, 2"); g("s_cselect_b32 s32, s14, s32"); g("s_cselect_b32 s33, s15, s33")
    for i in range(8):
        g(f"v_add_f32_dpp v{PT+i}, v{PT+i}, v{PT+i} row_ror:8 row_mask:0xf bank_mask:0x3")
    for i in range(8):
        g(f"v_add_f32_dpp v{PT+i}, v{PT+i+8}, v{PT+i+8} row_ror:8 row_mask:0xf bank_mask:0xc")
    for i in range(4):
        g(f"v_add_f32_dpp v{PT+i}, v{PT+i}, v{PT+i} row_shl:4 row_mask:0xf bank_mask:0x5")
    for i in range(4):
        g(f"v_add_f32_dpp v{PT+i}, v{PT+i+4}, v{PT+i+4} row_shr:4 row_mask:0xf bank_mask:0xa")
    g.nop(1)
    for i in range(4):
        g(f"v_add_f32_dpp v{PT+i}, v{PT+i}, v{PT+i} quad_perm:[2,3,0,1] {DPP_ALL}")
    g(f"v_cndmask_b32 v{PT}, v{PT}, v{PT+2}, s[40:41]")
    g(f"v_cndmask_b32 v{PT+1}, v{PT+1}, v{PT+3}, s[40:41]")
    g(f"v_mov_b32 v{SC}, v{SC+1}"); g(f"v_mov_b32 v{SC+1}, v{SC+2}"); g(f"v_mov_b32 v{SC+2}, v{SC+3}")
    for i in range(2):
        g(f"v_add_f32_dpp v{PT+i}, v{PT+i}, v{PT+i} quad_perm:[1,0,3,2] {DPP_ALL}")
    g(f"v_cndmask_b32 v{SC+3}, v{PT}, v{PT+1}, s[44:45]")
    g("s_add_u32 s31, s31, 1"); g("s_cmp_lt_u32 s31, 4"); g("s_cbranch_scc1 L_kloop")
    stamp(3)
    g(f"s_mov_b32 s3, {f2u(0.0625*LOG2E):#x}")
    for i in range(4):
        if round_scores: bf16r(g, SC + i)
        g(f"v_mul_f32 v{SC+i}, s3, v{SC+i}")
    M = 16; Lr = 17
    g(f"v_max_f32 v{M}, v{SC}, v{SC+1}"); g(f"v_max3_f32 v{M}, v{M}, v{SC+2}, v{SC+3}")
    wave_reduce(g, "v_max_f32", M, 36)
    for i in range(4): g(f"v_sub_f32 v{SC+i}, v{SC+i}, v{M}")
    for i in range(4): g(f"v_exp_f32 v{SC+i}, v{SC+i}")
    g.nop(1)
    g(f"v_add_f32 v{Lr}, v{SC}, v{SC+1}"); g(f"v_add_f32 v{Lr}, v{Lr}, v{SC+2}"); g(f"v_add_f32 v{Lr}, v{Lr}, v{SC+3}")
    for i in range(4): g(f"v_cvt_pk_bf16_f32 v{SC+i}, v{SC+i}, v{SC+i}")
    wave_reduce(g, "v_add_f32", Lr, 36)
    g("s_lshl_b32 s3, s30, 3"); g(f"s_add_u32 s3, s3, {L_ML}"); g("v_mov_b32 v1, s3")
    g(f"ds_write_b64 v1, v[{M}:{Lr}]")
    ACC = 8; AR = 20
    for i in range(8): g(f"v_mov_b32 v{ACC+i}, 0")
    g("s_mov_b32 s31, 0")
    g.lab("L_vloop")
    for t in range(16):
        a = AR + (t & 1) * 4
        for j in range(4):
            g(f"v_and_b32_dpp v{a+j}, v{SC}, v{4+j} row_newbcast:{t} {DPP_ALL}")
        g("s_waitcnt vmcnt(30)")
        g.nop(1)
        s = RING + 2 * t * 4
        g(f"v_mfma_f32_16x16x32_bf16 v[{ACC}:{ACC+3}], v[{a}:{a+3}], v[{s}:{s+3}], v[{ACC}:{ACC+3}]")
        g(f"v_mfma_f32_16x16x32_bf16 v[{ACC+4}:{ACC+7}], v[{a}:{a+3}], v[{s+4}:{s+7}], v[{ACC+4}:{ACC+7}]")
        ld(t, 0); ld(t, 1)
    g("s_add_u32 s32, s32, 131072"); g("s_addc_u32 s33, s33, 0")
    g("s_cmp_eq_u32 s31, 2"); g("s_cselect_b32 s34, 0, s34")
    g(f"v_mov_b32 v{SC}, v{SC+1}"); g(f"v_mov_b32 v{SC+1}, v{SC+2}"); g(f"v_mov_b32 v{SC+2}, v{SC+3}")
    g("s_add_u32 s31, s31, 1"); g("s_cmp_lt_u32 s31, 4"); g("s_cbranch_scc1 L_vloop")
    stamp(4)
    g("v_and_b32 v1, 1, v3"); g("v_lshlrev_b32 v1, 4, v1"); g("v_lshl_add_u32 v1, v2, 5, v1")
    g("s_lshl_b32 s3, s30, 10"); g(f"s_add_u32 s3, s3, {L_OP}"); g("v_add_u32 v1, s3, v1")
    g.nop(6)
    g(f"ds_write_b128 v1, v[{ACC}:{ACC+3}]"); g(f"ds_write_b128 v1, v[{ACC+4}:{ACC+7}] offset:512")
    g("s_waitcnt lgkmcnt(0)")
    g("s_barrier")
    if stamps:
        g("s_branch L_stampout")
    g("s_endpgm")

    W = 56
    XR = 8
    XE = 12
    A = 16
    AC = 20
    WOFF = 13; T0 = 14; T1 = 15; T2 = 48; T3 = 49; T4 = 50; T5 = 51; RW = 52; LW = 53
    g.lab("L_helper")
    g("s_setprio 3")
    g(f"v_lshrrev_b32 v{RW}, 3, v2"); g(f"v_lshl_add_u32 v{RW}, v{RW}, 2, v3")
    g(f"v_and_b32 v{LW}, 7, v2"); g(f"v_lshlrev_b32 v{LW}, 4, v{LW}")
    g("s_mul_i32 s30, s27, 56")
    g(f"v_and_b32 v{T0}, 63, v0"); g(f"v_lshlrev_b32 v{T0}, 4, v{T0}")
    g(f"v_lshl_add_u32 v{T1}, v2, 2, v3"); g(f"v_add_u32 v{T1}, s30, v{T1}"); g(f"v_lshlrev_b32 v{T1}, 1, v{T1}")
    g(f"v_add_u32 v{WOFF}, s30, v{RW}"); g(f"v_lshlrev_b32 v{WOFF}, 13, v{WOFF}"); g(f"v_add_u32 v{WOFF}, v{WOFF}, v{LW}")
    for u in range(7): g(f"s_mov_b32 s{48+u}, {u*65536}")
    g("s_mul_i32 s3, s24, 896"); g("s_lshl_b32 s31, s25, 9")
    g("s_waitcnt lgkmcnt(0)")
    g("s_add_u32 s36, s4, s3"); g("s_addc_u32 s37, s5, 0"); g("s_mov_b32 s38, 896")
    g("s_add_u32 s32, s10, s31"); g("s_addc_u32 s33, s11, 0"); g(f"s_sub_u32 s34, {448*8192}, s31")
    g(f"buffer_load_dwordx4 v[{XR}:{XR+3}], v{T0}, s[36:39], 0 offen")
    g(f"buffer_load_ushort v{XE}, v{T1}, s[36:39], 0 offen")
    for u in range(7):
        for c in range(4):
            s = W + (u * 4 + c) * 4
            g(f"buffer_load_dwordx4 v[{s}:{s+3}], v{WOFF}, s[32:35], s{48+u} offen offset:{c*128} {wflag}")
    g(f"v_mov_b32 v{T2}, {L_CNT}"); g(f"v_mov_b32 v{T3}, 0"); g(f"ds_write_b32 v{T2}, v{T3}")
    g("s_waitcnt vmcnt(28)")
    E = AC
    for i in range(4):
        g(f"v_lshlrev_b32 v{E+2*i}, 16, v{XR+i}"); g(f"v_and_b32 v{E+2*i+1}, 0xffff0000, v{XR+i}")
    g(f"v_add_f32 v{T2}, v{E}, v{E+1}")
    for i in range(2, 8): g(f"v_add_f32 v{T2}, v{T2}, v{E+i}")
    wave_reduce(g, "v_add_f32", T2, 40 + 0)
    g(f"v_mul_f32 v{T2}, {f2u(1.0/448):#x}, v{T2}")
    for i in range(8): g(f"v_sub_f32 v{E+i}, v{E+i}, v{T2}")
    g(f"v_mul_f32 v{T3}, v{E}, v{E}")
    for i in range(1, 8): g(f"v_fmac_f32 v{T3}, v{E+i}, v{E+i}")
    g(f"v_cmp_gt_u32 vcc, {56*16}, v{T0}"); g.nop(2); g(f"v_cndmask_b32 v{T3}, 0, v{T3}, vcc")
    wave_reduce(g, "v_add_f32", T3, 40)
    g("s_mov_b32 s43, 0x20000")
    g(f"v_mul_f32 v{T3}, {f2u(1.0/448):#x}, v{T3}")
    bf16r(g, T2); bf16r(g, T3)
    g(f"v_add_f32 v{T3}, {f2u(1e-5):#x}, v{T3}"); bf16r(g, T3)
    g(f"v_sqrt_f32 v{T3}, v{T3}"); g.nop(1); bf16r(g, T3)
    g(f"v_rcp_f32 v{T3}, v{T3}")
    g(f"v_lshlrev_b32 v{XE}, 16, v{XE}"); g(f"v_sub_f32 v{XE}, v{XE}, v{T2}"); bf16r(g, XE)
    g(f"v_mul_f32 v{XE}, v{XE}, v{T3}")
    g(f"v_cvt_pk_bf16_f32 v{XE}, v{XE}, v{XE}")
    def buildA(P, u):
        for j in range(4):
            g(f"v_and_b32_dpp v{A+j}, v{P}, v{4+j} row_newbcast:{2*u} row_mask:0xf bank_mask:0x3")
        for j in range(4):
            g(f"v_and_b32_dpp v{A+j}, v{P}, v{4+j} row_newbcast:{2*u+1} row_mask:0xf bank_mask:0xc")
    def mfma(c, s, first):
        cc = "0" if first else f"v[{AC+4*c}:{AC+4*c+3}]"
        g(f"v_mfma_f32_16x16x32_bf16 v[{AC+4*c}:{AC+4*c+3}], v[{A}:{A+3}], v[{s}:{s+3}], {cc}")
    g.nop(2)
    for u in range(7):
        buildA(XE, u)
        g(f"s_waitcnt vmcnt({24-4*u})"); g.nop(1)
        for c in range(4): mfma(c, W + (u * 4 + c) * 4, u == 0)
    g("s_mov_b32 s44, 0x00ff00ff"); g("s_mov_b32 s45, 0xff00ff00")
    PP = 54; SET = 55
    g(f"v_and_b32 v{PP}, 1, v3"); g(f"v_lshlrev_b32 v{PP}, 4, v{PP}"); g(f"v_lshl_add_u32 v{PP}, v{LW}, 1, v{PP}")
    g(f"v_lshrrev_b32 v{SET}, 1, v3"); g("s_lshl_b32 s3, s27, 1"); g(f"v_add_u32 v{SET}, s3, v{SET}")
    def write_partials(base, stride, ncol):
        g(f"s_mov_b32 s3, {stride}"); g(f"v_mul_lo_u32 v{T2}, v{SET}, s3"); g(f"v_add_u32 v{T2}, v{T2}, v{PP}")
        g.nop(8)
        g("s_mov_b64 exec, s[44:45]")
        for c in range(ncol):
            g(f"ds_write_b128 v{T2}, v[{AC+4*c}:{AC+4*c+3}] offset:{base + c*256}")
        g("s_mov_b64 exec, -1")
        g("s_waitcnt lgkmcnt(0)")
    def sum16(dst, addr, base, stride, tmp):
        for i in range(16):
            g(f"ds_read_b32 v{tmp+i}, v{addr} offset:{base + i*stride}")
        g("s_waitcnt lgkmcnt(0)")
        for st in (8, 4, 2):
            for i in range(st): g(f"v_add_f32 v{tmp+i}, v{tmp+i}, v{tmp+i+st}")
        g(f"v_add_f32 v{dst}, v{tmp}, v{tmp+1}")
    write_partials(L_QP, 1024, 4)
    g("s_barrier")
    g("s_cmp_ge_u32 s27, 4"); g("s_cbranch_scc1 L_q_done")
    g(f"v_lshlrev_b32 v{T3}, 2, v0")
    sum16(T2, T3, L_QP, 1024, AC)
    g(f"v_cvt_pk_bf16_f32 v{T2}, v{T2}, v{T2}")
    g(f"v_lshlrev_b32 v{T3}, 1, v0")
    g(f"ds_write_b16 v{T3}, v{T2} offset:{L_QBF}" if L_QBF < 65536 else f"v_add_u32 v{T3}, {L_QBF}, v{T3}")
    if L_QBF >= 65536: g(f"ds_write_b16 v{T3}, v{T2}")
    g("s_waitcnt lgkmcnt(0)")
    g.lab("L_q_done")
    g("s_barrier")
    g("s_setprio 0")
    stamp(1)
    def hbar(target, name):
        g(f"v_mov_b32 v{T2}, {L_CNT}"); g(f"v_mov_b32 v{T3}, 1")
        g("s_mov_b64 exec, 1"); g(f"ds_add_u32 v{T2}, v{T3}"); g("s_mov_b64 exec, -1")
        g.lab(name)
        g(f"ds_read_b32 v{T3}, v{T2}"); g("s_waitcnt lgkmcnt(0)")
        g(f"v_readfirstlane_b32 s3, v{T3}"); g(f"s_cmp_ge_u32 s3, {target}"); g(f"s_cbranch_scc1 {name}_x")
        g("s_sleep 1"); g(f"s_branch {name}")
        g.lab(name + "_x")
    g("s_cmp_ge_u32 s28, 28"); g("s_cbranch_scc1 L_ffn_done")
    g("s_lshl_b32 s31, s28, 7")
    g("s_add_u32 s32, s16, s31"); g("s_addc_u32 s33, s17, 0"); g(f"s_sub_u32 s34, {448*3584}, s31")
    g("s_add_u32 s36, s18, s31"); g("s_addc_u32 s37, s19, 0"); g("s_mov_b32 s38, s34")
    g(f"s_mul_i32 s31, s28, {64*896}")
    g("s_add_u32 s40, s20, s31"); g("s_addc_u32 s41, s21, 0"); g(f"s_mov_b32 s42, {64*896}")
    g(f"v_add_u32 v{WOFF}, s30, v{RW}"); g("s_movk_i32 s3, 3584"); g(f"v_mul_lo_u32 v{WOFF}, v{WOFF}, s3"); g(f"v_add_u32 v{WOFF}, v{WOFF}, v{LW}")
    for u in range(7): g(f"s_mov_b32 s{48+u}, {u*8*3584}")
    for u in range(7):
        for c in range(2):
            s = W + (u * 2 + c) * 4
            srd = "s[32:35]" if c == 0 else "s[36:39]"
            g(f"buffer_load_dwordx4 v[{s}:{s+3}], v{WOFF}, {srd}, s{48+u} offen {wflag}")
    g("s_lshl_b32 s3, s27, 3"); g(f"v_add_u32 v{T4}, s3, v{RW}"); g("s_movk_i32 s3, 896"); g(f"v_mul_lo_u32 v{T4}, v{T4}, s3"); g(f"v_add_u32 v{T4}, v{T4}, v{LW}")
    for c in range(7):
        s = W + (14 + c) * 4
        g(f"buffer_load_dwordx4 v[{s}:{s+3}], v{T4}, s[40:43], 0 offen offset:{c*128} {wflag}")
    for u in range(7):
        buildA(XE, u)
        g(f"s_waitcnt vmcnt({19-2*u})"); g.nop(1)
        for c in range(2): mfma(c, W + (u * 2 + c) * 4, u == 0)
    write_partials(L_F1, 512, 2)
    hbar(8, "L_hb1")
    g(f"v_and_b32 v{T4}, 1, v2"); g(f"v_lshl_add_u32 v{T4}, v{T4}, 2, v3"); g("s_lshl_b32 s3, s27, 3"); g(f"v_add_u32 v{T4}, s3, v{T4}"); g(f"v_lshlrev_b32 v{T4}, 2, v{T4}")
    sum16(T2, T4, L_F1, 512, AC)
    sum16(T3, T4, L_F1 + 256, 512, AC)
    bf16r(g, T2); bf16r(g, T3)
    g(f"v_mul_f32 v{T5}, v{T2}, v{T3}"); g(f"v_cvt_pk_bf16_f32 v{T5}, v{T5}, v{T5}")
    g.nop(2)
    buildA(T5, 0)
    g("s_waitcnt vmcnt(0)"); g.nop(1)
    for c in range(7): mfma(c, W + (14 + c) * 4, True)
    write_partials(L_F2, 1792, 7)
    hbar(16, "L_hb2")
    g("s_cmp_ge_u32 s27, 7"); g("s_cbranch_scc1 L_ffn_done")
    g(f"v_lshlrev_b32 v{T4}, 2, v0")
    sum16(T2, T4, L_F2, 1792, AC)
    g("s_lshl_b32 s3, s28, 2"); g("s_add_u32 s3, s3, s24"); g("s_mul_i32 s3, s3, 1792"); g(f"s_add_u32 s3, s3, {WS_F}")
    g("s_add_u32 s36, s22, s3"); g("s_addc_u32 s37, s23, 0"); g("s_mov_b32 s38, 1792")
    g(f"buffer_store_dword v{T2}, v{T4}, s[36:39], 0 offen")
    g.lab("L_ffn_done")
    stamp(2)
    g("s_lshl_b32 s3, s25, 8"); g("s_lshl_b32 s31, s27, 5"); g("s_add_u32 s3, s3, s31"); g("s_mul_i32 s3, s3, 896")
    g("s_add_u32 s32, s12, s3"); g("s_addc_u32 s33, s13, 0"); g(f"s_mov_b32 s34, {32*896}")
    g("s_movk_i32 s3, 896"); g(f"v_mul_lo_u32 v{WOFF}, v{RW}, s3"); g(f"v_add_u32 v{WOFF}, v{WOFF}, v{LW}")
    for u in range(4): g(f"s_mov_b32 s{48+u}, {u*8*896}")
    for u in range(4):
        for c in range(7):
            s = W + (u * 7 + c) * 4
            g(f"buffer_load_dwordx4 v[{s}:{s+3}], v{WOFF}, s[32:35], s{48+u} offen offset:{c*128} {wflag}")
    g(f"v_and_b32 v{T4}, 7, v2"); g(f"v_lshl_add_u32 v{T4}, v{T4}, 2, v3"); g(f"v_add_u32 v{T4}, s31, v{T4}"); g(f"v_lshlrev_b32 v{T4}, 2, v{T4}")
    g(f"v_add_u32 v{T4}, {L_OP}, v{T4}")
    g(f"v_mov_b32 v{T5}, {L_ML}")
    g("s_lshl_b32 s3, s29, 11"); g("s_add_u32 s36, s22, s3"); g("s_addc_u32 s37, s23, 0"); g("s_mov_b32 s38, 2048")
    g("s_waitcnt vmcnt(0)")
    stamp(3)
    g("s_barrier")
    stamp(4)
    ML = AC
    OW = AC + 8
    g(f"ds_read_b128 v[{ML}:{ML+3}], v{T5}"); g(f"ds_read_b128 v[{ML+4}:{ML+7}], v{T5} offset:16")
    for w in range(4): g(f"ds_read_b32 v{OW+w}, v{T4} offset:{w*1024}")
    g("s_waitcnt lgkmcnt(4)")
    MM = XR; LL = XR + 1
    g(f"v_max_f32 v{MM}, v{ML}, v{ML+2}"); g(f"v_max3_f32 v{MM}, v{MM}, v{ML+4}, v{ML+6}")
    for w in range(4): g(f"v_sub_f32 v{ML+2*w}, v{ML+2*w}, v{MM}")
    for w in range(4): g(f"v_exp_f32 v{ML+2*w}, v{ML+2*w}")
    g("s_waitcnt lgkmcnt(0)")
    g(f"v_mul_f32 v{T2}, v{ML}, v{OW}"); g(f"v_mul_f32 v{LL}, v{ML}, v{ML+1}")
    for w in range(1, 4):
        g(f"v_fmac_f32 v{T2}, v{ML+2*w}, v{OW+w}"); g(f"v_fmac_f32 v{LL}, v{ML+2*w}, v{ML+2*w+1}")
    g(f"v_cvt_pk_bf16_f32 v{T5}, v{T2}, v{T2}")
    g.nop(2)
    for u in range(4):
        buildA(T5, u)
        g.nop(2)
        for c in range(7): mfma(c, W + (u * 7 + c) * 4, u == 0)
    write_partials(L_YP, 1792, 7)
    g("s_barrier")
    g(f"v_lshlrev_b32 v{T4}, 2, v0")
    g("s_cmp_ge_u32 s27, 7"); g("s_cbranch_scc1 L_ml_out")
    g(f"v_add_u32 v{T3}, {L_YP}, v{T4}")
    sum16(T2, T3, 0, 1792, AC)
    g(f"buffer_store_dword v{T2}, v{T4}, s[36:39], 0 offen")
    if stamps: g("s_branch L_stampout")
    g("s_endpgm")
    g.lab("L_ml_out")
    g("s_mov_b64 exec, 1")
    g(f"buffer_store_dwordx2 v[{MM}:{LL}], v{T4}, s[36:39], 0 offen")
    if stamps:
        g.lab("L_stampout")
        g("s_waitcnt vmcnt(0)")
        stamp(5)
        g("s_getreg_b32 s76, hwreg(HW_REG_XCC_ID)")
        g("s_waitcnt lgkmcnt(0)")
        g("s_lshl_b32 s3, s2, 4"); g("s_add_u32 s3, s3, s27"); g("s_lshl_b32 s3, s3, 5"); g(f"s_add_u32 s3, s3, {WS_STAMP}")
        g("s_add_u32 s36, s22, s3"); g("s_addc_u32 s37, s23, 0"); g("s_mov_b32 s38, 32"); g("s_mov_b32 s39, 0x20000")
        g("s_mov_b64 exec, 1")
        for i in range(6): g(f"v_mov_b32 v{8+i}, s{64+2*i}")
        g("v_mov_b32 v14, s76"); g("v_mov_b32 v15, 0"); g("v_mov_b32 v1, 0")
        g("buffer_store_dwordx4 v[8:11], v1, s[36:39], 0 offen"); g("buffer_store_dwordx4 v[12:15], v1, s[36:39], 0 offen offset:16")
    g.lab("L_end")
    g("s_endpgm")

    g.L.append(".globl final_kernel"); g.L.append(".p2align 8"); g.L.append(".type final_kernel,@function")
    g.lab("final_kernel")
    g("s_cmp_ge_u32 s2, 28"); g("s_cbranch_scc1 L_fend")
    g("s_load_dwordx2 s[4:5], s[0:1], 0"); g("s_load_dwordx2 s[6:7], s[0:1], 72"); g("s_load_dwordx2 s[8:9], s[0:1], 88")
    g("s_mul_i32 s3, s2, 37"); g("s_lshr_b32 s10, s3, 8")
    g("s_mul_i32 s3, s10, 7"); g("s_sub_u32 s11, s2, s3")
    g("v_lshrrev_b32 v1, 6, v0"); g("v_and_b32 v2, 63, v0"); g("s_lshl_b32 s3, s11, 6"); g("v_readfirstlane_b32 s12, v1")
    g("v_add_u32 v3, s3, v2")
    g("v_lshlrev_b32 v4, 2, v3")
    g("v_mov_b32 v5, 1792")
    g("s_lshl_b32 s3, s10, 6"); g("s_lshl_b32 s13, s12, 4"); g("s_add_u32 s3, s3, s13"); g("s_lshl_b32 s3, s3, 11")
    g("s_mul_i32 s13, s12, 28"); g("s_add_u32 s13, s13, s10"); g("s_mul_i32 s13, s13, 1792"); g(f"s_add_u32 s13, s13, {WS_F}")
    g("s_mul_i32 s14, s10, 896")
    g("s_waitcnt lgkmcnt(0)")
    g("s_add_u32 s16, s8, s3"); g("s_addc_u32 s17, s9, 0"); g("s_mov_b32 s18, 32768"); g("s_mov_b32 s19, 0x20000")
    g("s_add_u32 s20, s8, s13"); g("s_addc_u32 s21, s9, 0"); g(f"s_mov_b32 s22, {7*4*1792}"); g("s_mov_b32 s23, 0x20000")
    g("s_add_u32 s24, s4, s14"); g("s_addc_u32 s25, s5, 0"); g("s_mov_b32 s26, 896"); g("s_mov_b32 s27, 0x20000")
    g("s_add_u32 s28, s6, s14"); g("s_addc_u32 s29, s7, 0"); g("s_mov_b32 s30, 896"); g("s_mov_b32 s31, 0x20000")
    for i in range(16):
        g(f"s_mov_b32 s3, {i*2048}")
        g(f"buffer_load_dwordx2 v[{32+2*i}:{33+2*i}], v5, s[16:19], s3 offen")
        g(f"buffer_load_dword v{8+i}, v4, s[16:19], s3 offen")
    for i in range(7):
        g(f"s_mov_b32 s3, {i*4*1792}")
        g(f"buffer_load_dword v{24+i}, v4, s[20:23], s3 offen")
    g("v_lshlrev_b32 v6, 1, v3")
    g("buffer_load_ushort v7, v6, s[24:27], 0 offen")
    g("v_mov_b32 v64, 0")
    g("s_waitcnt vmcnt(8)")
    for hh in range(4):
        m = [32 + 8 * hh + 2 * s for s in range(4)]; y = [8 + 4 * hh + s for s in range(4)]
        g(f"v_max_f32 v65, v{m[0]}, v{m[1]}"); g(f"v_max3_f32 v65, v65, v{m[2]}, v{m[3]}")
        for s in range(4): g(f"v_sub_f32 v{m[s]}, v{m[s]}, v65")
        for s in range(4): g(f"v_exp_f32 v{m[s]}, v{m[s]}")
        g.nop(1)
        g(f"v_mul_f32 v66, v{m[0]}, v{m[0]+1}"); g(f"v_mul_f32 v67, v{m[0]}, v{y[0]}")
        for s in range(1, 4):
            g(f"v_fmac_f32 v66, v{m[s]}, v{m[s]+1}"); g(f"v_fmac_f32 v67, v{m[s]}, v{y[s]}")
        g("v_rcp_f32 v66, v66"); g.nop(1)
        g("v_fmac_f32 v64, v67, v66")
    g("s_waitcnt vmcnt(1)")
    g("v_add_f32 v65, v24, v25")
    for i in range(2, 7): g(f"v_add_f32 v65, v65, v{24+i}")
    g("v_lshlrev_b32 v1, 3, v0")
    g("ds_write_b64 v1, v[64:65]")
    g("s_waitcnt lgkmcnt(0)"); g("s_barrier")
    g("s_cmp_lg_u32 s12, 0"); g("s_cbranch_scc1 L_fend")
    for w in range(4): g(f"ds_read_b64 v[{8+2*w}:{9+2*w}], v1 offset:{w*512}")
    g("s_waitcnt vmcnt(0) lgkmcnt(0)")
    g("v_add_f32 v8, v8, v10"); g("v_add_f32 v12, v12, v14"); g("v_add_f32 v8, v8, v12")
    g("v_add_f32 v9, v9, v11"); g("v_add_f32 v13, v13, v15"); g("v_add_f32 v9, v9, v13")
    bf16r(g, 8); bf16r(g, 9)
    g(f"v_mul_f32 v10, {f2u(-LOG2E):#x}, v9"); g("v_exp_f32 v10, v10"); g.nop(1)
    g("v_add_f32 v10, 1.0, v10"); g("v_rcp_f32 v10, v10"); g.nop(1)
    g("v_mul_f32 v9, v9, v10"); bf16r(g, 9)
    g("v_mul_f32 v8, v8, v9"); bf16r(g, 8)
    g("v_lshlrev_b32 v7, 16, v7"); g("v_add_f32 v8, v8, v7"); g("v_cvt_pk_bf16_f32 v8, v8, v8")
    g("buffer_store_short v8, v6, s[28:31], 0 offen")
    g.lab("L_fend")
    g("s_endpgm")

    def kd(name, nv, ns):
        g.L += [f".amdhsa_kernel {name}", f"  .amdhsa_next_free_vgpr {nv}", f"  .amdhsa_next_free_sgpr {ns}",
                f"  .amdhsa_accum_offset {(nv+3)//4*4}", "  .amdhsa_group_segment_fixed_size 0", "  .amdhsa_kernarg_size 96",
                "  .amdhsa_user_sgpr_count 2", "  .amdhsa_user_sgpr_kernarg_segment_ptr 1",
                "  .amdhsa_system_sgpr_workgroup_id_x 1", "  .amdhsa_float_denorm_mode_32 3", ".end_amdhsa_kernel"]
    g.L.append('.section .rodata,"a"'); g.L.append(".p2align 6")
    kd(KN, 168, 80)
    g.L.append(".p2align 6")
    kd("final_kernel", 72, 40)
    open(path, "w").write("\n".join(g.L) + "\n")

if __name__ == "__main__":
    gen("v1_lin.s", "lin")
    gen("v1_head.s", "head")
    gen("v1_pair.s", "pair")
    gen("v1_lin_st.s", "lin", stamps=True)
    gen("v1_head_st.s", "head", stamps=True)
```

```python
import sys
KN = "recurrent_scan__mha_block_cached__glu_gated_bilinear__decode_kernel"
HDR = open("recurrent_scan__mha_block_cached__glu_gated_bilinear__decode.s.ref").read().split("; Override launch")[0]

LOG2E = 1.4426950408889634
import struct
def f2u(x): return struct.unpack("<I", struct.pack("<f", x))[0]

class G:
    def __init__(s): s.L = []
    def __call__(s, t): s.L.append("    " + t)
    def lab(s, t): s.L.append(t + ":")
    def c(s, t): s.L.append("    ; " + t)
    def nop(s, n):
        while n > 0:
            k = min(n, 16); s(f"s_nop {k-1}"); n -= k

DPP_ALL = "row_mask:0xf bank_mask:0xf"

L_QP   = 0
L_F1   = 16384
L_F2   = 24576
L_YP   = 53248
L_QBF  = 81920
L_OP   = 82432
L_ML   = 86528
L_CNT  = 86592
L_TOT  = 86656

WS_F = 256 * 2048
WS_STAMP = 1 << 20

def row_reduce(g, op, v, tmp=None):
    for r in (8, 4, 2, 1):
        g.nop(2)
        g(f"{op}_dpp v{v}, v{v}, v{v} row_ror:{r} {DPP_ALL}")

def wave_reduce(g, op, v, s0):
    row_reduce(g, op, v)
    g.nop(1)
    for i in range(4):
        g(f"v_readlane_b32 s{s0+i}, v{v}, {16*i}")
    g.nop(2)
    g(f"v_mov_b32 v{v}, s{s0}")
    for i in range(1, 4):
        g(f"{op} v{v}, s{s0+i}, v{v}")

def bf16r(g, v, src=None):
    src = v if src is None else src
    g(f"v_cvt_pk_bf16_f32 v{v}, v{src}, v{src}")
    g(f"v_and_b32 v{v}, 0xffff0000, v{v}")

def gen(path, wgmap="lin", stamps=False, round_scores=True, kvflag="nt", vflag=None, wflag="", wq_cols=4, wo_mode="burst", ffn=True, hprio=3):
    g = G()
    def stamp(idx):
        if stamps:
            g(f"s_memrealtime s[{64+2*idx}:{65+2*idx}]")
    g.L.append(HDR.rstrip("\n"))
    g.L.append(f"; @launch kernel={KN} grid=(256,1,1) block=(768,1,1) lds={L_TOT}")
    g.L.append("; @launch kernel=final_kernel grid=(28,1,1) block=(256,1,1) lds=4096")
    g.L.append('.amdgcn_target "amdgcn-amd-amdhsa--gfx950"')
    g.L.append(".text"); g.L.append(f".globl {KN}"); g.L.append(".p2align 8"); g.L.append(f".type {KN},@function")
    g.lab(KN)
    g("s_cmp_ge_u32 s2, 256"); g("s_cbranch_scc1 L_end")
    stamp(0)
    g("s_load_dwordx8 s[4:11], s[0:1], 0")
    g("s_load_dwordx2 s[12:13], s[0:1], 32")
    g("s_load_dwordx4 s[16:19], s[0:1], 48")
    g("s_load_dwordx2 s[20:21], s[0:1], 64")
    g("s_load_dwordx2 s[22:23], s[0:1], 88")
    g("v_lshrrev_b32 v1, 6, v0")
    g("v_and_b32 v2, 15, v0")
    g("v_readfirstlane_b32 s27, v1")
    g("v_bfe_u32 v3, v0, 4, 2")
    if wgmap == "lin":
        g("s_and_b32 s26, s2, 3"); g("s_bfe_u32 s25, s2, 0x40002"); g("s_lshr_b32 s24, s2, 6")
    elif wgmap == "head":
        g("s_and_b32 s25, s2, 7"); g("s_lshl_b32 s25, s25, 1"); g("s_bfe_u32 s3, s2, 0x10003"); g("s_or_b32 s25, s25, s3")
        g("s_bfe_u32 s26, s2, 0x20004"); g("s_lshr_b32 s24, s2, 6")
    elif wgmap == "pair":
        g("s_bfe_u32 s25, s2, 0x20001"); g("s_lshl_b32 s25, s25, 2"); g("s_bfe_u32 s3, s2, 0x20004"); g("s_or_b32 s25, s25, s3")
        g("s_and_b32 s26, s2, 1"); g("s_bfe_u32 s3, s2, 0x10003"); g("s_lshl_b32 s3, s3, 1"); g("s_or_b32 s26, s26, s3")
        g("s_lshr_b32 s24, s2, 6")
    g("s_and_b32 s28, s2, 63")
    g("s_lshl_b32 s29, s24, 4"); g("s_add_u32 s29, s29, s25"); g("s_lshl_b32 s29, s29, 2"); g("s_add_u32 s29, s29, s26")
    g("v_and_b32 v8, 1, v2"); g("v_lshlrev_b32 v8, 4, v8"); g("v_mov_b32 v9, 0xffff"); g("v_lshlrev_b32 v8, v8, v9")
    g("v_bfe_u32 v9, v2, 1, 2")
    for j in range(4):
        g(f"v_cmp_eq_u32 vcc, {j}, v9"); g.nop(2); g(f"v_cndmask_b32 v{4+j}, 0, v8, vcc")
    g("s_mov_b32 s35, 0x20000"); g("s_mov_b32 s39, 0x20000"); g("s_mov_b32 s43, 0x20000"); g("s_mov_b32 s47, 0x20000")
    g("s_cmp_lt_u32 s27, 8"); g("s_cbranch_scc1 L_helper")

    RING = 40
    Q = 8
    PT = 16
    SC = 32
    VOFF = 36
    g.c("streamer")
    g("s_sub_u32 s30, s27, 8")
    g("s_lshl_b32 s3, s30, 11")
    g(f"v_lshlrev_b32 v{VOFF}, 9, v3"); g("v_lshlrev_b32 v1, 4, v2"); g(f"v_add3_u32 v{VOFF}, v{VOFF}, v1, s3")
    for t in range(16): g(f"s_mov_b32 s{48+t}, {t*8192}")
    g("s_lshl_b32 s3, s29, 19")
    g("s_waitcnt lgkmcnt(0)")
    g("s_add_u32 s32, s6, s3"); g("s_addc_u32 s33, s7, 0"); g("s_mov_b32 s34, 131072")
    g("s_add_u32 s14, s8, s3"); g("s_addc_u32 s15, s9, 0")
    cur = [kvflag]
    def ld(t, half):
        s = RING + (2 * t + half) * 4
        off = " offset:256" if half else ""
        g(f"buffer_load_dwordx4 v[{s}:{s+3}], v{VOFF}, s[32:35], s{48+t} offen{off} {cur[0]}")
    for t in range(16):
        ld(t, 0); ld(t, 1)
    g("s_add_u32 s32, s32, 131072"); g("s_addc_u32 s33, s33, 0")
    stamp(1)
    g("s_barrier")
    g("s_barrier")
    g(f"v_add_u32 v1, {L_QBF}, v1")
    g(f"ds_read_b128 v[{Q}:{Q+3}], v1"); g(f"ds_read_b128 v[{Q+4}:{Q+7}], v1 offset:256")
    g("s_mov_b32 s40, 0xcccccccc"); g("s_mov_b32 s41, 0xcccccccc")
    g("s_mov_b32 s44, 0xaaaaaaaa"); g("s_mov_b32 s45, 0xaaaaaaaa")
    g("s_mov_b32 s31, 0")
    g("s_waitcnt lgkmcnt(0)")
    stamp(2)
    g.lab("L_kloop")
    for t in range(16):
        g("s_waitcnt vmcnt(30)")
        s = RING + 2 * t * 4
        for i in range(8):
            c = "0" if i == 0 else f"v{PT+t}"
            g(f"v_dot2_f32_bf16 v{PT+t}, v{s+i}, v{Q+i}, {c}")
        ld(t, 0); ld(t, 1)
    g("s_add_u32 s32, s32, 131072"); g("s_addc_u32 s33, s33, 0")
    g("s_cmp_eq_u32 s31, 2"); g("s_cselect_b32 s32, s14, s32"); g("s_cselect_b32 s33, s15, s33")
    for i in range(8):
        g(f"v_add_f32_dpp v{PT+i}, v{PT+i}, v{PT+i} row_ror:8 row_mask:0xf bank_mask:0x3")
    for i in range(8):
        g(f"v_add_f32_dpp v{PT+i}, v{PT+i+8}, v{PT+i+8} row_ror:8 row_mask:0xf bank_mask:0xc")
    for i in range(4):
        g(f"v_add_f32_dpp v{PT+i}, v{PT+i}, v{PT+i} row_shl:4 row_mask:0xf bank_mask:0x5")
    for i in range(4):
        g(f"v_add_f32_dpp v{PT+i}, v{PT+i+4}, v{PT+i+4} row_shr:4 row_mask:0xf bank_mask:0xa")
    g.nop(1)
    for i in range(4):
        g(f"v_add_f32_dpp v{PT+i}, v{PT+i}, v{PT+i} quad_perm:[2,3,0,1] {DPP_ALL}")
    g(f"v_cndmask_b32 v{PT}, v{PT}, v{PT+2}, s[40:41]")
    g(f"v_cndmask_b32 v{PT+1}, v{PT+1}, v{PT+3}, s[40:41]")
    g(f"v_mov_b32 v{SC}, v{SC+1}"); g(f"v_mov_b32 v{SC+1}, v{SC+2}"); g(f"v_mov_b32 v{SC+2}, v{SC+3}")
    for i in range(2):
        g(f"v_add_f32_dpp v{PT+i}, v{PT+i}, v{PT+i} quad_perm:[1,0,3,2] {DPP_ALL}")
    g(f"v_cndmask_b32 v{SC+3}, v{PT}, v{PT+1}, s[44:45]")
    g("s_add_u32 s31, s31, 1"); g("s_cmp_lt_u32 s31, 4"); g("s_cbranch_scc1 L_kloop")
    stamp(3)
    g(f"s_mov_b32 s3, {f2u(0.0625*LOG2E):#x}")
    for i in range(4):
        if round_scores: bf16r(g, SC + i)
        g(f"v_mul_f32 v{SC+i}, s3, v{SC+i}")
    M = 16; Lr = 17
    g(f"v_max_f32 v{M}, v{SC}, v{SC+1}"); g(f"v_max3_f32 v{M}, v{M}, v{SC+2}, v{SC+3}")
    wave_reduce(g, "v_max_f32", M, 36)
    for i in range(4): g(f"v_sub_f32 v{SC+i}, v{SC+i}, v{M}")
    for i in range(4): g(f"v_exp_f32 v{SC+i}, v{SC+i}")
    g.nop(1)
    g(f"v_add_f32 v{Lr}, v{SC}, v{SC+1}"); g(f"v_add_f32 v{Lr}, v{Lr}, v{SC+2}"); g(f"v_add_f32 v{Lr}, v{Lr}, v{SC+3}")
    for i in range(4): g(f"v_cvt_pk_bf16_f32 v{SC+i}, v{SC+i}, v{SC+i}")
    wave_reduce(g, "v_add_f32", Lr, 36)
    g("s_lshl_b32 s3, s30, 3"); g(f"s_add_u32 s3, s3, {L_ML}"); g("v_mov_b32 v1, s3")
    g(f"ds_write_b64 v1, v[{M}:{Lr}]")
    ACC = 8; AR = 20
    for i in range(8): g(f"v_mov_b32 v{ACC+i}, 0")
    g("s_mov_b32 s31, 0")
    g.lab("L_vloop")
    if vflag is not None: cur[0] = vflag
    for t in range(16):
        a = AR + (t & 1) * 4
        for j in range(4):
            g(f"v_and_b32_dpp v{a+j}, v{SC}, v{4+j} row_newbcast:{t} {DPP_ALL}")
        g("s_waitcnt vmcnt(30)")
        g.nop(1)
        s = RING + 2 * t * 4
        g(f"v_mfma_f32_16x16x32_bf16 v[{ACC}:{ACC+3}], v[{a}:{a+3}], v[{s}:{s+3}], v[{ACC}:{ACC+3}]")
        g(f"v_mfma_f32_16x16x32_bf16 v[{ACC+4}:{ACC+7}], v[{a}:{a+3}], v[{s+4}:{s+7}], v[{ACC+4}:{ACC+7}]")
        ld(t, 0); ld(t, 1)
    g("s_add_u32 s32, s32, 131072"); g("s_addc_u32 s33, s33, 0")
    g("s_cmp_eq_u32 s31, 2"); g("s_cselect_b32 s34, 0, s34")
    g(f"v_mov_b32 v{SC}, v{SC+1}"); g(f"v_mov_b32 v{SC+1}, v{SC+2}"); g(f"v_mov_b32 v{SC+2}, v{SC+3}")
    g("s_add_u32 s31, s31, 1"); g("s_cmp_lt_u32 s31, 4"); g("s_cbranch_scc1 L_vloop")
    stamp(4)
    g("v_and_b32 v1, 1, v3"); g("v_lshlrev_b32 v1, 4, v1"); g("v_lshl_add_u32 v1, v2, 5, v1")
    g("s_lshl_b32 s3, s30, 10"); g(f"s_add_u32 s3, s3, {L_OP}"); g("v_add_u32 v1, s3, v1")
    g.nop(6)
    g(f"ds_write_b128 v1, v[{ACC}:{ACC+3}]"); g(f"ds_write_b128 v1, v[{ACC+4}:{ACC+7}] offset:512")
    g("s_waitcnt lgkmcnt(0)")
    g("s_barrier")
    if stamps:
        g("s_branch L_stampout")
    g("s_endpgm")

    W = 56
    XR = 8
    XE = 12
    A = 16
    AC = 20
    WOFF = 13; T0 = 14; T1 = 15; T2 = 48; T3 = 49; T4 = 50; T5 = 51; RW = 52; LW = 53
    g.lab("L_helper")
    g(f"s_setprio {hprio}")
    g(f"v_lshrrev_b32 v{RW}, 3, v2"); g(f"v_lshl_add_u32 v{RW}, v{RW}, 2, v3")
    g(f"v_and_b32 v{LW}, 7, v2"); g(f"v_lshlrev_b32 v{LW}, 4, v{LW}")
    g("s_mul_i32 s30, s27, 56")
    g(f"v_and_b32 v{T0}, 63, v0"); g(f"v_lshlrev_b32 v{T0}, 4, v{T0}")
    g(f"v_lshl_add_u32 v{T1}, v2, 2, v3"); g(f"v_add_u32 v{T1}, s30, v{T1}"); g(f"v_lshlrev_b32 v{T1}, 1, v{T1}")
    g(f"v_add_u32 v{WOFF}, s30, v{RW}"); g(f"v_lshlrev_b32 v{WOFF}, 13, v{WOFF}"); g(f"v_add_u32 v{WOFF}, v{WOFF}, v{LW}")
    for u in range(7): g(f"s_mov_b32 s{48+u}, {u*65536}")
    g("s_mul_i32 s3, s24, 896"); g("s_lshl_b32 s31, s25, 9")
    g("s_waitcnt lgkmcnt(0)")
    g("s_add_u32 s36, s4, s3"); g("s_addc_u32 s37, s5, 0"); g("s_mov_b32 s38, 896")
    g("s_add_u32 s32, s10, s31"); g("s_addc_u32 s33, s11, 0"); g(f"s_sub_u32 s34, {448*8192}, s31")
    g("s_mov_b32 s44, s32"); g("s_mov_b32 s45, s33"); g("s_mov_b32 s46, 0")
    g(f"buffer_load_dwordx4 v[{XR}:{XR+3}], v{T0}, s[36:39], 0 offen")
    g(f"buffer_load_ushort v{XE}, v{T1}, s[36:39], 0 offen")
    for u in range(7):
        for c in range(4):
            s = W + (u * 4 + c) * 4
            srd = "s[32:35]" if c < wq_cols else "s[44:47]"
            g(f"buffer_load_dwordx4 v[{s}:{s+3}], v{WOFF}, {srd}, s{48+u} offen offset:{c*128} {wflag}")
    g(f"v_mov_b32 v{T2}, {L_CNT}"); g(f"v_mov_b32 v{T3}, 0"); g(f"ds_write_b32 v{T2}, v{T3}")
    g("s_waitcnt vmcnt(28)")
    E = AC
    for i in range(4):
        g(f"v_lshlrev_b32 v{E+2*i}, 16, v{XR+i}"); g(f"v_and_b32 v{E+2*i+1}, 0xffff0000, v{XR+i}")
    g(f"v_add_f32 v{T2}, v{E}, v{E+1}")
    for i in range(2, 8): g(f"v_add_f32 v{T2}, v{T2}, v{E+i}")
    wave_reduce(g, "v_add_f32", T2, 40 + 0)
    g(f"v_mul_f32 v{T2}, {f2u(1.0/448):#x}, v{T2}")
    for i in range(8): g(f"v_sub_f32 v{E+i}, v{E+i}, v{T2}")
    g(f"v_mul_f32 v{T3}, v{E}, v{E}")
    for i in range(1, 8): g(f"v_fmac_f32 v{T3}, v{E+i}, v{E+i}")
    g(f"v_cmp_gt_u32 vcc, {56*16}, v{T0}"); g.nop(2); g(f"v_cndmask_b32 v{T3}, 0, v{T3}, vcc")
    wave_reduce(g, "v_add_f32", T3, 40)
    g("s_mov_b32 s43, 0x20000")
    g(f"v_mul_f32 v{T3}, {f2u(1.0/448):#x}, v{T3}")
    bf16r(g, T2); bf16r(g, T3)
    g(f"v_add_f32 v{T3}, {f2u(1e-5):#x}, v{T3}"); bf16r(g, T3)
    g(f"v_sqrt_f32 v{T3}, v{T3}"); g.nop(1); bf16r(g, T3)
    g(f"v_rcp_f32 v{T3}, v{T3}")
    g(f"v_lshlrev_b32 v{XE}, 16, v{XE}"); g(f"v_sub_f32 v{XE}, v{XE}, v{T2}"); bf16r(g, XE)
    g(f"v_mul_f32 v{XE}, v{XE}, v{T3}")
    g(f"v_cvt_pk_bf16_f32 v{XE}, v{XE}, v{XE}")
    def buildA(P, u):
        for j in range(4):
            g(f"v_and_b32_dpp v{A+j}, v{P}, v{4+j} row_newbcast:{2*u} row_mask:0xf bank_mask:0x3")
        for j in range(4):
            g(f"v_and_b32_dpp v{A+j}, v{P}, v{4+j} row_newbcast:{2*u+1} row_mask:0xf bank_mask:0xc")
    def mfma(c, s, first):
        cc = "0" if first else f"v[{AC+4*c}:{AC+4*c+3}]"
        g(f"v_mfma_f32_16x16x32_bf16 v[{AC+4*c}:{AC+4*c+3}], v[{A}:{A+3}], v[{s}:{s+3}], {cc}")
    g.nop(2)
    for u in range(7):
        buildA(XE, u)
        g(f"s_waitcnt vmcnt({24-4*u})"); g.nop(1)
        for c in range(4): mfma(c, W + (u * 4 + c) * 4, u == 0)
    g("s_mov_b32 s44, 0x00ff00ff"); g("s_mov_b32 s45, 0xff00ff00")
    PP = 54; SET = 55
    g(f"v_and_b32 v{PP}, 1, v3"); g(f"v_lshlrev_b32 v{PP}, 4, v{PP}"); g(f"v_lshl_add_u32 v{PP}, v{LW}, 1, v{PP}")
    g(f"v_lshrrev_b32 v{SET}, 1, v3"); g("s_lshl_b32 s3, s27, 1"); g(f"v_add_u32 v{SET}, s3, v{SET}")
    def write_partials(base, stride, ncol):
        g(f"s_mov_b32 s3, {stride}"); g(f"v_mul_lo_u32 v{T2}, v{SET}, s3"); g(f"v_add_u32 v{T2}, v{T2}, v{PP}")
        g.nop(8)
        g("s_mov_b64 exec, s[44:45]")
        for c in range(ncol):
            g(f"ds_write_b128 v{T2}, v[{AC+4*c}:{AC+4*c+3}] offset:{base + c*256}")
        g("s_mov_b64 exec, -1")
        g("s_waitcnt lgkmcnt(0)")
    def sum16(dst, addr, base, stride, tmp):
        for i in range(16):
            g(f"ds_read_b32 v{tmp+i}, v{addr} offset:{base + i*stride}")
        g("s_waitcnt lgkmcnt(0)")
        for st in (8, 4, 2):
            for i in range(st): g(f"v_add_f32 v{tmp+i}, v{tmp+i}, v{tmp+i+st}")
        g(f"v_add_f32 v{dst}, v{tmp}, v{tmp+1}")
    write_partials(L_QP, 1024, 4)
    g("s_barrier")
    g("s_cmp_ge_u32 s27, 4"); g("s_cbranch_scc1 L_q_done")
    g(f"v_lshlrev_b32 v{T3}, 2, v0")
    sum16(T2, T3, L_QP, 1024, AC)
    g(f"v_cvt_pk_bf16_f32 v{T2}, v{T2}, v{T2}")
    g(f"v_lshlrev_b32 v{T3}, 1, v0")
    g(f"ds_write_b16 v{T3}, v{T2} offset:{L_QBF}" if L_QBF < 65536 else f"v_add_u32 v{T3}, {L_QBF}, v{T3}")
    if L_QBF >= 65536: g(f"ds_write_b16 v{T3}, v{T2}")
    g("s_waitcnt lgkmcnt(0)")
    g.lab("L_q_done")
    g("s_barrier")
    g("s_setprio 0")
    stamp(1)
    def hbar(target, name):
        g(f"v_mov_b32 v{T2}, {L_CNT}"); g(f"v_mov_b32 v{T3}, 1")
        g("s_mov_b64 exec, 1"); g(f"ds_add_u32 v{T2}, v{T3}"); g("s_mov_b64 exec, -1")
        g.lab(name)
        g(f"ds_read_b32 v{T3}, v{T2}"); g("s_waitcnt lgkmcnt(0)")
        g(f"v_readfirstlane_b32 s3, v{T3}"); g(f"s_cmp_ge_u32 s3, {target}"); g(f"s_cbranch_scc1 {name}_x")
        g("s_sleep 1"); g(f"s_branch {name}")
        g.lab(name + "_x")
    g(f"s_cmp_ge_u32 s28, {28 if ffn else 0}"); g("s_cbranch_scc1 L_ffn_done")
    g("s_lshl_b32 s31, s28, 7")
    g("s_add_u32 s32, s16, s31"); g("s_addc_u32 s33, s17, 0"); g(f"s_sub_u32 s34, {448*3584}, s31")
    g("s_add_u32 s36, s18, s31"); g("s_addc_u32 s37, s19, 0"); g("s_mov_b32 s38, s34")
    g(f"s_mul_i32 s31, s28, {64*896}")
    g("s_add_u32 s40, s20, s31"); g("s_addc_u32 s41, s21, 0"); g(f"s_mov_b32 s42, {64*896}")
    g(f"v_add_u32 v{WOFF}, s30, v{RW}"); g("s_movk_i32 s3, 3584"); g(f"v_mul_lo_u32 v{WOFF}, v{WOFF}, s3"); g(f"v_add_u32 v{WOFF}, v{WOFF}, v{LW}")
    for u in range(7): g(f"s_mov_b32 s{48+u}, {u*8*3584}")
    for u in range(7):
        for c in range(2):
            s = W + (u * 2 + c) * 4
            srd = "s[32:35]" if c == 0 else "s[36:39]"
            g(f"buffer_load_dwordx4 v[{s}:{s+3}], v{WOFF}, {srd}, s{48+u} offen {wflag}")
    g("s_lshl_b32 s3, s27, 3"); g(f"v_add_u32 v{T4}, s3, v{RW}"); g("s_movk_i32 s3, 896"); g(f"v_mul_lo_u32 v{T4}, v{T4}, s3"); g(f"v_add_u32 v{T4}, v{T4}, v{LW}")
    for c in range(7):
        s = W + (14 + c) * 4
        g(f"buffer_load_dwordx4 v[{s}:{s+3}], v{T4}, s[40:43], 0 offen offset:{c*128} {wflag}")
    for u in range(7):
        buildA(XE, u)
        g(f"s_waitcnt vmcnt({19-2*u})"); g.nop(1)
        for c in range(2): mfma(c, W + (u * 2 + c) * 4, u == 0)
    write_partials(L_F1, 512, 2)
    hbar(8, "L_hb1")
    g(f"v_and_b32 v{T4}, 1, v2"); g(f"v_lshl_add_u32 v{T4}, v{T4}, 2, v3"); g("s_lshl_b32 s3, s27, 3"); g(f"v_add_u32 v{T4}, s3, v{T4}"); g(f"v_lshlrev_b32 v{T4}, 2, v{T4}")
    sum16(T2, T4, L_F1, 512, AC)
    sum16(T3, T4, L_F1 + 256, 512, AC)
    bf16r(g, T2); bf16r(g, T3)
    g(f"v_mul_f32 v{T5}, v{T2}, v{T3}"); g(f"v_cvt_pk_bf16_f32 v{T5}, v{T5}, v{T5}")
    g.nop(2)
    buildA(T5, 0)
    g("s_waitcnt vmcnt(0)"); g.nop(1)
    for c in range(7): mfma(c, W + (14 + c) * 4, True)
    write_partials(L_F2, 1792, 7)
    hbar(16, "L_hb2")
    g("s_cmp_ge_u32 s27, 7"); g("s_cbranch_scc1 L_ffn_done")
    g(f"v_lshlrev_b32 v{T4}, 2, v0")
    sum16(T2, T4, L_F2, 1792, AC)
    g("s_lshl_b32 s3, s28, 2"); g("s_add_u32 s3, s3, s24"); g("s_mul_i32 s3, s3, 1792"); g(f"s_add_u32 s3, s3, {WS_F}")
    g("s_add_u32 s36, s22, s3"); g("s_addc_u32 s37, s23, 0"); g("s_mov_b32 s38, 1792")
    g(f"buffer_store_dword v{T2}, v{T4}, s[36:39], 0 offen")
    g.lab("L_ffn_done")
    stamp(2)
    g("s_lshl_b32 s3, s25, 8"); g("s_lshl_b32 s31, s27, 5"); g("s_add_u32 s3, s3, s31"); g("s_mul_i32 s3, s3, 896")
    g("s_add_u32 s32, s12, s3"); g("s_addc_u32 s33, s13, 0"); g(f"s_mov_b32 s34, {0 if wo_mode == 'none' else (8*896 if wo_mode == 'quarter' else 32*896)}")
    g("s_movk_i32 s3, 896"); g(f"v_mul_lo_u32 v{WOFF}, v{RW}, s3"); g(f"v_add_u32 v{WOFF}, v{WOFF}, v{LW}")
    for u in range(4): g(f"s_mov_b32 s{48+u}, {u*8*896}")
    for u in range(4):
        for c in range(7):
            s = W + (u * 7 + c) * 4
            g(f"buffer_load_dwordx4 v[{s}:{s+3}], v{WOFF}, s[32:35], s{48+u} offen offset:{c*128} {wflag}")
            if wo_mode.startswith("thr"):
                g(f"s_waitcnt vmcnt({int(wo_mode[3:])-1})")
    g(f"v_and_b32 v{T4}, 7, v2"); g(f"v_lshl_add_u32 v{T4}, v{T4}, 2, v3"); g(f"v_add_u32 v{T4}, s31, v{T4}"); g(f"v_lshlrev_b32 v{T4}, 2, v{T4}")
    g(f"v_add_u32 v{T4}, {L_OP}, v{T4}")
    g(f"v_mov_b32 v{T5}, {L_ML}")
    g("s_lshl_b32 s3, s29, 11"); g("s_add_u32 s36, s22, s3"); g("s_addc_u32 s37, s23, 0"); g("s_mov_b32 s38, 2048")
    g("s_waitcnt vmcnt(0)")
    stamp(3)
    g("s_barrier")
    stamp(4)
    ML = AC
    OW = AC + 8
    g(f"ds_read_b128 v[{ML}:{ML+3}], v{T5}"); g(f"ds_read_b128 v[{ML+4}:{ML+7}], v{T5} offset:16")
    for w in range(4): g(f"ds_read_b32 v{OW+w}, v{T4} offset:{w*1024}")
    g("s_waitcnt lgkmcnt(4)")
    MM = XR; LL = XR + 1
    g(f"v_max_f32 v{MM}, v{ML}, v{ML+2}"); g(f"v_max3_f32 v{MM}, v{MM}, v{ML+4}, v{ML+6}")
    for w in range(4): g(f"v_sub_f32 v{ML+2*w}, v{ML+2*w}, v{MM}")
    for w in range(4): g(f"v_exp_f32 v{ML+2*w}, v{ML+2*w}")
    g("s_waitcnt lgkmcnt(0)")
    g(f"v_mul_f32 v{T2}, v{ML}, v{OW}"); g(f"v_mul_f32 v{LL}, v{ML}, v{ML+1}")
    for w in range(1, 4):
        g(f"v_fmac_f32 v{T2}, v{ML+2*w}, v{OW+w}"); g(f"v_fmac_f32 v{LL}, v{ML+2*w}, v{ML+2*w+1}")
    g(f"v_cvt_pk_bf16_f32 v{T5}, v{T2}, v{T2}")
    g.nop(2)
    for u in range(4):
        buildA(T5, u)
        g.nop(2)
        for c in range(7): mfma(c, W + (u * 7 + c) * 4, u == 0)
    write_partials(L_YP, 1792, 7)
    g("s_barrier")
    g(f"v_lshlrev_b32 v{T4}, 2, v0")
    g("s_cmp_ge_u32 s27, 7"); g("s_cbranch_scc1 L_ml_out")
    g(f"v_add_u32 v{T3}, {L_YP}, v{T4}")
    sum16(T2, T3, 0, 1792, AC)
    g(f"buffer_store_dword v{T2}, v{T4}, s[36:39], 0 offen")
    if stamps: g("s_branch L_stampout")
    g("s_endpgm")
    g.lab("L_ml_out")
    g("s_mov_b64 exec, 1")
    g(f"buffer_store_dwordx2 v[{MM}:{LL}], v{T4}, s[36:39], 0 offen")
    if stamps:
        g.lab("L_stampout")
        g("s_waitcnt vmcnt(0)")
        stamp(5)
        g("s_getreg_b32 s76, hwreg(HW_REG_XCC_ID)")
        g("s_waitcnt lgkmcnt(0)")
        g("s_lshl_b32 s3, s2, 4"); g("s_add_u32 s3, s3, s27"); g("s_lshl_b32 s3, s3, 5"); g(f"s_add_u32 s3, s3, {WS_STAMP}")
        g("s_add_u32 s36, s22, s3"); g("s_addc_u32 s37, s23, 0"); g("s_mov_b32 s38, 32"); g("s_mov_b32 s39, 0x20000")
        g("s_mov_b64 exec, 1")
        for i in range(6): g(f"v_mov_b32 v{8+i}, s{64+2*i}")
        g("v_mov_b32 v14, s76"); g("v_mov_b32 v15, 0"); g("v_mov_b32 v1, 0")
        g("buffer_store_dwordx4 v[8:11], v1, s[36:39], 0 offen"); g("buffer_store_dwordx4 v[12:15], v1, s[36:39], 0 offen offset:16")
    g.lab("L_end")
    g("s_endpgm")

    g.L.append(".globl final_kernel"); g.L.append(".p2align 8"); g.L.append(".type final_kernel,@function")
    g.lab("final_kernel")
    g("s_cmp_ge_u32 s2, 28"); g("s_cbranch_scc1 L_fend")
    g("s_load_dwordx2 s[4:5], s[0:1], 0"); g("s_load_dwordx2 s[6:7], s[0:1], 72"); g("s_load_dwordx2 s[8:9], s[0:1], 88")
    g("s_mul_i32 s3, s2, 37"); g("s_lshr_b32 s10, s3, 8")
    g("s_mul_i32 s3, s10, 7"); g("s_sub_u32 s11, s2, s3")
    g("v_lshrrev_b32 v1, 6, v0"); g("v_and_b32 v2, 63, v0"); g("s_lshl_b32 s3, s11, 6"); g("v_readfirstlane_b32 s12, v1")
    g("v_add_u32 v3, s3, v2")
    g("v_lshlrev_b32 v4, 2, v3")
    g("v_mov_b32 v5, 1792")
    g("s_lshl_b32 s3, s10, 6"); g("s_lshl_b32 s13, s12, 4"); g("s_add_u32 s3, s3, s13"); g("s_lshl_b32 s3, s3, 11")
    g("s_mul_i32 s13, s12, 28"); g("s_add_u32 s13, s13, s10"); g("s_mul_i32 s13, s13, 1792"); g(f"s_add_u32 s13, s13, {WS_F}")
    g("s_mul_i32 s14, s10, 896")
    g("s_waitcnt lgkmcnt(0)")
    g("s_add_u32 s16, s8, s3"); g("s_addc_u32 s17, s9, 0"); g("s_mov_b32 s18, 32768"); g("s_mov_b32 s19, 0x20000")
    g("s_add_u32 s20, s8, s13"); g("s_addc_u32 s21, s9, 0"); g(f"s_mov_b32 s22, {7*4*1792}"); g("s_mov_b32 s23, 0x20000")
    g("s_add_u32 s24, s4, s14"); g("s_addc_u32 s25, s5, 0"); g("s_mov_b32 s26, 896"); g("s_mov_b32 s27, 0x20000")
    g("s_add_u32 s28, s6, s14"); g("s_addc_u32 s29, s7, 0"); g("s_mov_b32 s30, 896"); g("s_mov_b32 s31, 0x20000")
    for i in range(16):
        g(f"s_mov_b32 s3, {i*2048}")
        g(f"buffer_load_dwordx2 v[{32+2*i}:{33+2*i}], v5, s[16:19], s3 offen")
        g(f"buffer_load_dword v{8+i}, v4, s[16:19], s3 offen")
    for i in range(7):
        g(f"s_mov_b32 s3, {i*4*1792}")
        g(f"buffer_load_dword v{24+i}, v4, s[20:23], s3 offen")
    g("v_lshlrev_b32 v6, 1, v3")
    g("buffer_load_ushort v7, v6, s[24:27], 0 offen")
    g("v_mov_b32 v64, 0")
    g("s_waitcnt vmcnt(8)")
    for hh in range(4):
        m = [32 + 8 * hh + 2 * s for s in range(4)]; y = [8 + 4 * hh + s for s in range(4)]
        g(f"v_max_f32 v65, v{m[0]}, v{m[1]}"); g(f"v_max3_f32 v65, v65, v{m[2]}, v{m[3]}")
        for s in range(4): g(f"v_sub_f32 v{m[s]}, v{m[s]}, v65")
        for s in range(4): g(f"v_exp_f32 v{m[s]}, v{m[s]}")
        g.nop(1)
        g(f"v_mul_f32 v66, v{m[0]}, v{m[0]+1}"); g(f"v_mul_f32 v67, v{m[0]}, v{y[0]}")
        for s in range(1, 4):
            g(f"v_fmac_f32 v66, v{m[s]}, v{m[s]+1}"); g(f"v_fmac_f32 v67, v{m[s]}, v{y[s]}")
        g("v_rcp_f32 v66, v66"); g.nop(1)
        g("v_fmac_f32 v64, v67, v66")
    g("s_waitcnt vmcnt(1)")
    g("v_add_f32 v65, v24, v25")
    for i in range(2, 7): g(f"v_add_f32 v65, v65, v{24+i}")
    g("v_lshlrev_b32 v1, 3, v0")
    g("ds_write_b64 v1, v[64:65]")
    g("s_waitcnt lgkmcnt(0)"); g("s_barrier")
    g("s_cmp_lg_u32 s12, 0"); g("s_cbranch_scc1 L_fend")
    for w in range(4): g(f"ds_read_b64 v[{8+2*w}:{9+2*w}], v1 offset:{w*512}")
    g("s_waitcnt vmcnt(0) lgkmcnt(0)")
    g("v_add_f32 v8, v8, v10"); g("v_add_f32 v12, v12, v14"); g("v_add_f32 v8, v8, v12")
    g("v_add_f32 v9, v9, v11"); g("v_add_f32 v13, v13, v15"); g("v_add_f32 v9, v9, v13")
    bf16r(g, 8); bf16r(g, 9)
    g(f"v_mul_f32 v10, {f2u(-LOG2E):#x}, v9"); g("v_exp_f32 v10, v10"); g.nop(1)
    g("v_add_f32 v10, 1.0, v10"); g("v_rcp_f32 v10, v10"); g.nop(1)
    g("v_mul_f32 v9, v9, v10"); bf16r(g, 9)
    g("v_mul_f32 v8, v8, v9"); bf16r(g, 8)
    g("v_lshlrev_b32 v7, 16, v7"); g("v_add_f32 v8, v8, v7"); g("v_cvt_pk_bf16_f32 v8, v8, v8")
    g("buffer_store_short v8, v6, s[28:31], 0 offen")
    g.lab("L_fend")
    g("s_endpgm")

    def kd(name, nv, ns):
        g.L += [f".amdhsa_kernel {name}", f"  .amdhsa_next_free_vgpr {nv}", f"  .amdhsa_next_free_sgpr {ns}",
                f"  .amdhsa_accum_offset {(nv+3)//4*4}", "  .amdhsa_group_segment_fixed_size 0", "  .amdhsa_kernarg_size 96",
                "  .amdhsa_user_sgpr_count 2", "  .amdhsa_user_sgpr_kernarg_segment_ptr 1",
                "  .amdhsa_system_sgpr_workgroup_id_x 1", "  .amdhsa_float_denorm_mode_32 3", ".end_amdhsa_kernel"]
    g.L.append('.section .rodata,"a"'); g.L.append(".p2align 6")
    kd(KN, 168, 80)
    g.L.append(".p2align 6")
    kd("final_kernel", 72, 40)
    open(path, "w").write("\n".join(g.L) + "\n")

if __name__ == "__main__":
    names = []
    def G_(n, **k):
        gen(n, **k); names.append(n)
    G_("d_nt_nt.s", wgmap="pair")
    G_("d_nt_def.s", wgmap="pair", vflag="")
    G_("d_def_nt.s", wgmap="pair", kvflag="", vflag="nt")
    G_("d_def_def.s", wgmap="pair", kvflag="")
    G_("d_nt_sc1.s", wgmap="pair", vflag="sc1")
    G_("d_nt_sc0nt.s", wgmap="pair", vflag="sc0 nt")
    print(" ".join(names)); print(", ".join('"work/%s"' % n for n in names))
```
